```python
import torch

def _softmax(x, axis=-1):
    return torch.softmax(x, dim=axis)
def _gelu(x):
    return torch.nn.functional.gelu(x, approximate="tanh")
def _silu(x):
    return torch.nn.functional.silu(x)
def _sigmoid(x):
    return torch.sigmoid(x)
def _layernorm(x, axis=-1, eps=1e-5):
    m = x.mean(dim=axis, keepdim=True)
    v = x.var(dim=axis, keepdim=True, unbiased=False)
    return (x - m) / torch.sqrt(v + eps)
def _scatter_add(tgt, idx, src, axis=0):
    return tgt.clone().index_add_(axis, idx, src)
def _segment_sum(src, seg, n):
    out = torch.zeros((n,) + src.shape[1:], dtype=src.dtype)
    return out.index_add_(0, seg, src)
def _pad(x, pw):
    flat = tuple(v for pair in reversed(pw) for v in pair)
    return torch.nn.functional.pad(x, flat)

kernel_name = 'sequential_preLN__mha_block_cached__dense_activation_silu__decode'

def setup_inputs():

    _w = (lambda a: (lambda t: t.to(torch.bfloat16) if t.is_floating_point() else t)(torch.as_tensor(a)))
    def _A_setup():
        B, Sq, D = 1, 1, 512
        H, Sk, Dh = 32, 16384, 128
        return {
            "x": _w((lambda *s: torch.randn(*s, dtype=torch.bfloat16) * 0.1)(B, Sq, D)),
            "k_cache": _w((lambda *s: torch.randn(*s, dtype=torch.bfloat16) * 1.6)(B, H, Sk, Dh)),
            "v_cache": _w((lambda *s: torch.randn(*s, dtype=torch.bfloat16) * 1.6)(B, H, Sk, Dh)),
            "wq": _w((lambda *s: torch.randn(*s, dtype=torch.bfloat16) * 1.6)(D, H * Dh) * (D ** -0.5)),
            "wo": _w((lambda *s: torch.randn(*s, dtype=torch.bfloat16) * 1.6)(H * Dh, D) * ((H * Dh) ** -0.5)),
        }
    _A_in = _A_setup()

    def _B_setup():
        B, S, D, F = 1, 1, 512, 1792
        return {
            "x": _w((lambda *s: torch.randn(*s, dtype=torch.bfloat16) * 0.1)(B, S, D)),
            "w1": _w((lambda *s: torch.randn(*s, dtype=torch.bfloat16) * 3.2)(D, F) * (D ** -0.5)),
            "w2": _w((lambda *s: torch.randn(*s, dtype=torch.bfloat16) * 3.2)(F, D) * (F ** -0.5)),
        }
    _B_in = _B_setup()

    return {
        "A_x": _A_in["x"],
        "A_k_cache": _A_in["k_cache"],
        "A_v_cache": _A_in["v_cache"],
        "A_wq": _A_in["wq"],
        "A_wo": _A_in["wo"],
        "B_x": _B_in["x"],
        "B_w1": _B_in["w1"],
        "B_w2": _B_in["w2"],
    }

def reference(A_x, A_k_cache, A_v_cache, A_wq, A_wo, B_x, B_w1, B_w2):
    def _A_ref(x, k_cache, v_cache, wq, wo):
        B, Sq, D = x.shape
        H, Dh = 32, 128
        q = (lambda x, *d: x.permute(*d))((x @ wq).reshape(B, Sq, H, Dh), 0, 2, 1, 3)
        scores = torch.einsum("bhqd,bhkd->bhqk", q, k_cache) * (Dh ** -0.5)
        p = _softmax(scores, axis=-1)
        o = torch.einsum("bhqk,bhkd->bhqd", p, v_cache)
        return (lambda x, *d: x.permute(*d))(o, 0, 2, 1, 3).reshape(B, Sq, H * Dh) @ wo

    def _B_ref(x, w1, w2):
        h = torch.einsum("bsd,df->bsf", x, w1)
        h = _silu(h)
        out = torch.einsum("bsf,fd->bsd", h, w2)
        return out

    x = A_x
    h = x + _A_ref(_layernorm(x, axis=-1), A_k_cache, A_v_cache, A_wq, A_wo)
    h2 = h + _B_ref(_layernorm(h, axis=-1), B_w1, B_w2)
    return h2
```

```python
import re

_reg_re = re.compile(r'\b([vsa])\[(\d+):(\d+)\]|\b([vsa])(\d+)\b|\b(vcc|exec|m0|scc)\b')
TRANS = ('v_exp_f32', 'v_log_f32', 'v_rcp_f32', 'v_rsq_f32', 'v_sqrt_f32', 'v_sin_f32', 'v_cos_f32')

def regs_of(op):
    out = set()
    for m in _reg_re.finditer(op):
        if m.group(1):
            for i in range(int(m.group(2)), int(m.group(3)) + 1):
                out.add(m.group(1) + str(i))
        elif m.group(4):
            out.add(m.group(4) + m.group(5))
        else:
            out.add(m.group(6))
    return out

def split_ops(s):
    ops = []; depth = 0; cur = ''
    for ch in s:
        if ch == '[': depth += 1
        if ch == ']': depth -= 1
        if ch == ',' and depth == 0:
            ops.append(cur.strip()); cur = ''
        else:
            cur += ch
    if cur.strip(): ops.append(cur.strip())
    return ops

class Ins:
    def __init__(self, text):
        self.text = text
        t = text.strip()
        parts = t.split(None, 1)
        self.op = parts[0]
        rest = parts[1] if len(parts) > 1 else ''
        ops = split_ops(rest)
        mods = ''
        if ops:
            last = ops[-1].split(None, 1)
            if len(last) > 1 and not last[0].startswith('quad_perm'):
                ops[-1] = last[0]; mods = last[1]
        self.ops = ops; self.mods = mods
        op = self.op
        self.valu = op.startswith('v_')
        self.mfma = op.startswith('v_mfma')
        self.dot = op.startswith('v_dot')
        self.trans = any(op.startswith(x) for x in TRANS)
        self.dpp = '_dpp' in op
        self.sdwa = '_sdwa' in op
        self.perm = op.startswith('v_permlane')
        self.rdlane = op.startswith('v_readlane') or op.startswith('v_readfirstlane')
        self.vmem = op.startswith('buffer_') or op.startswith('global_')
        self.ds = op.startswith('ds_')
        self.salu = op.startswith('s_') and not op.startswith(('s_nop', 's_waitcnt', 's_barrier', 's_cbranch', 's_branch', 's_endpgm', 's_sleep', 's_setprio'))
        R = [regs_of(o) for o in ops]
        self.w = set(); self.r = set()
        self.srcC = set(); self.srcAB = set()
        self.wide_store = False
        if self.mfma:
            self.w = R[0]; self.srcAB = R[1] | R[2]; self.srcC = R[3]; self.r = R[1] | R[2] | R[3]
        elif self.perm:
            self.w = R[0] | R[1]; self.r = R[0] | R[1]
        elif self.valu:
            self.w = set(R[0])
            for x in R[1:]: self.r |= x
            if op.startswith(('v_fmac', 'v_dot2c', 'v_mac')): self.r |= R[0]
            if op.startswith('v_cndmask') and len(ops) == 3: self.r.add('vcc')
            if self.dot:
                if op.startswith('v_dot2c'):
                    self.srcC = R[0]; self.srcAB = R[1] | R[2]
                else:
                    self.srcC = R[3]; self.srcAB = R[1] | R[2]
        elif self.vmem:
            if '_load' in op:
                self.w = R[0]
                for x in R[1:]: self.r |= x
            elif '_atomic' in op:
                for x in R: self.r |= x
                if 'sc0' in mods.split(): self.w = R[0]
            else:
                for x in R: self.r |= x
                if 'x4' in op or 'x3' in op:
                    self.wide_store = True; self.store_data = R[0]
        elif self.ds:
            if op.startswith('ds_read') or op.startswith('ds_bpermute') or op.startswith('ds_swizzle'):
                self.w = R[0]
                for x in R[1:]: self.r |= x
            else:
                for x in R: self.r |= x
        elif self.salu:
            if ops and not op.startswith(('s_cmp', 's_bitcmp')):
                self.w = R[0]
                for x in R[1:]: self.r |= x
            else:
                for x in R: self.r |= x
        if op == 's_nop':
            self.states = int(ops[0]) + 1
        else:
            self.states = 1

def isv(r): return r[0] == 'v' and r != 'vcc'
def iss(r): return (r[0] == 's' and r != 'scc') or r == 'vcc'

def need(p, c):
    n = 0
    pw_v = {r for r in p.w if isv(r) or r[0] == 'a'}
    pw_s = {r for r in p.w if iss(r)}
    if p.mfma:
        passes = 8 if '32x32' in p.op else 4
        lat = {4: 8, 8: 12}[passes]
        if c.mfma:
            if c.srcAB & pw_v: n = max(n, lat)
            if c.srcC & pw_v:
                if c.srcC == p.w and c.op == p.op: pass
                else: n = max(n, {4: 6, 8: 10}[passes])
        elif c.valu:
            if (c.r | c.w) & pw_v: n = max(n, lat)
            if c.w & p.srcC: n = max(n, {4: 3, 8: 7}[passes])
        elif c.vmem or c.ds:
            if (c.r | c.w) & pw_v: n = max(n, lat)
        return n
    if p.valu:
        if p.dot:
            if c.valu or c.vmem or c.ds:
                if c.dot and c.op == p.op and not c.mfma:
                    if c.srcAB & pw_v: n = max(n, 3)
                    if (c.w & pw_v) and not (c.srcC & pw_v): n = max(n, 3)
                else:
                    if (c.r | c.w) & pw_v: n = max(n, 3)
        if c.mfma and (c.r & pw_v): n = max(n, 2)
        if c.dpp and (c.r & pw_v): n = max(n, 2)
        if c.perm and (c.r & pw_v): n = max(n, 2)
        if c.rdlane and (regs_of(c.ops[1]) & pw_v): n = max(n, 1)
        if p.trans and c.valu and not c.trans and (c.r & pw_v): n = max(n, 1)
        if p.sdwa and c.valu and ((c.r | c.w) & pw_v): n = max(n, 1)
        if pw_s:
            if c.valu and (c.r & pw_s):
                n = max(n, 2)
                if c.rdlane and len(c.ops) > 2 and (regs_of(c.ops[2]) & pw_s): n = max(n, 4)
            if c.vmem and (c.r & pw_s): n = max(n, 5)
            if c.salu and (c.r & pw_s): n = max(n, 1)
        if 'exec' in p.w:
            if c.dpp: n = max(n, 5)
            if c.perm or c.rdlane or c.mfma: n = max(n, 4)
    if p.wide_store and (c.w & p.store_data):
        n = max(n, 2)
    return n

class Asm:
    def __init__(self):
        self.lines = []
        self.hist = []
        self.nops = 0
    def raw(self, s):
        self.lines.append(s)
    def comment(self, s):
        self.lines.append('    ; ' + s)
    def label(self, name):
        self.lines.append(name + ':')
    def fence(self, n=None):
        worst = 0; d = 0
        for p in reversed(self.hist):
            lat = 0
            if p.mfma: lat = 12 if '32x32' in p.op else 8
            elif p.dot: lat = 3
            elif p.valu: lat = 5 if any(iss(r) for r in p.w) else 2
            elif p.wide_store: lat = 2
            worst = max(worst, lat - d)
            d += p.states
        if n is not None: worst = n
        if worst > 0:
            self._nop(worst)
        self.hist = []
    def _nop(self, k):
        while k > 0:
            m = min(k, 16)
            i = Ins(f's_nop {m-1}')
            self.lines.append(f'    s_nop {m-1}')
            self.hist.append(i); self.nops += 1
            k -= m
    def __call__(self, text):
        for t in text.strip().split('\n'):
            t = t.strip()
            if not t: continue
            if t.startswith(';'):
                self.lines.append('    ' + t); continue
            code = t.split(';')[0].strip()
            c = Ins(code)
            d = 0; req = 0
            for p in reversed(self.hist):
                k = need(p, c)
                if k - d > req: req = k - d
                d += p.states
                if d > 24: break
            if req > 0: self._nop(req)
            self.lines.append('    ' + t)
            self.hist.append(c)
            if len(self.hist) > 40: self.hist = self.hist[-40:]
    def text(self):
        return '\n'.join(self.lines) + '\n'
```

```python
import sys
sys.path.insert(0, 'dev')
from asmlib import Asm

KN = 'sequential_preLN__mha_block_cached__dense_activation_silu__decode_kernel'
HEADER = open('sequential_preLN__mha_block_cached__dense_activation_silu__decode.s.ref').read().split('; Override launch')[0]

WS_ML = 0x0
WS_OP = 0x1000
WS_Y  = 0x12000
WS_F  = 0x14000
WS_SZ = 0x15000
WS_DIAG = 0x100000
L_QP = 0
L_OP = 2048
L_ML = 4096
LDS_BYTES = 8192

DPPF = 'row_mask:0xf bank_mask:0xf'
LOG2E = 0x3fb8aa3b
SCALE = 0x3db504f3
EPS = 0x3727c5ac
INV512 = 0x3b000000

def gen(diag=False, kvpol='nt', wqpol='nt', wpol='nt', timeout=1 << 22):
    a = Asm()
    a.raw(HEADER.rstrip('\n'))
    a.raw(f'; @launch grid=(256,1,1) block=(512,1,1) lds={LDS_BYTES}')
    a.raw('.amdgcn_target "amdgcn-amd-amdhsa--gfx950"')
    a.raw('.text')
    a.raw(f'.globl {KN}')
    a.raw('.p2align 8')
    a.raw(f'.type {KN},@function')
    a.label(KN)

    nstamp = [0]
    def stamp(i):
        if diag:
            a(f's_memrealtime s[{60+2*i}:{61+2*i}]')

    def allreduce(op, regs, tmps):
        for pat in ('quad_perm:[1,0,3,2]', 'quad_perm:[2,3,0,1]', 'row_half_mirror', 'row_mirror'):
            for r in regs:
                a(f'{op}_dpp v{r}, v{r}, v{r} {pat} {DPPF}')
        for sw in ('v_permlane16_swap_b32', 'v_permlane32_swap_b32'):
            for r, t in zip(regs, tmps):
                a(f'v_mov_b32 v{t}, v{r}')
            for r, t in zip(regs, tmps):
                a(f'{sw} v{r}, v{t}')
            for r, t in zip(regs, tmps):
                a(f'{op} v{r}, v{r}, v{t}')

    def bf16r(dst, src):
        a(f'v_cvt_pk_bf16_f32 v{dst}, v{src}, v{src}')
        a(f'v_and_b32 v{dst}, 0xffff0000, v{dst}')

    def make_masks(base, t0, t1):
        a(f'v_and_b32 v{t0}, 1, v0')
        a(f'v_lshlrev_b32 v{t0}, 4, v{t0}')
        a(f'v_mov_b32 v{t1}, 0xffff')
        a(f'v_lshlrev_b32 v{t0}, v{t0}, v{t1}')
        a(f'v_bfe_u32 v{t1}, v0, 1, 3')
        for r in range(4):
            a(f'v_cmp_eq_u32 vcc, {r}, v{t1}')
            a(f'v_cndmask_b32 v{base+r}, 0, v{t0}, vcc')

    def ln_stats(x, d, s1, s2, t1, t2, mb, rs, spiv):
        a(f'v_readfirstlane_b32 s{spiv}, v{x}')
        for j in range(8):
            a(f'v_subrev_f32 v{d+j}, s{spiv}, v{x+j}')
        a(f'v_add_f32 v{s1}, v{d}, v{d+1}')
        a(f'v_mul_f32 v{s2}, v{d}, v{d}')
        a(f'v_add_f32 v{t1}, v{d+2}, v{d+3}')
        a(f'v_mul_f32 v{t2}, v{d+1}, v{d+1}')
        a(f'v_add_f32 v{s1}, v{s1}, v{d+4}')
        a(f'v_fmac_f32 v{s2}, v{d+2}, v{d+2}')
        a(f'v_add_f32 v{t1}, v{t1}, v{d+5}')
        a(f'v_fmac_f32 v{t2}, v{d+3}, v{d+3}')
        a(f'v_add_f32 v{s1}, v{s1}, v{d+6}')
        a(f'v_fmac_f32 v{s2}, v{d+4}, v{d+4}')
        a(f'v_add_f32 v{t1}, v{t1}, v{d+7}')
        a(f'v_fmac_f32 v{t2}, v{d+5}, v{d+5}')
        a(f'v_fmac_f32 v{s2}, v{d+6}, v{d+6}')
        a(f'v_fmac_f32 v{t2}, v{d+7}, v{d+7}')
        a(f'v_add_f32 v{s1}, v{s1}, v{t1}')
        a(f'v_add_f32 v{s2}, v{s2}, v{t2}')
        allreduce('v_add_f32', [s1, s2], [t1, t2])
        a(f'v_mul_f32 v{t1}, {hex(INV512)}, v{s1}')
        a(f'v_mul_f32 v{t2}, {hex(INV512)}, v{s2}')
        a(f'v_fma_f32 v{t2}, -v{t1}, v{t1}, v{t2}')
        a(f'v_add_f32 v{mb}, s{spiv}, v{t1}')
        a(f'v_max_f32 v{t2}, 0, v{t2}')
        bf16r(t2, t2)
        a(f'v_add_f32 v{t2}, {hex(EPS)}, v{t2}')
        bf16r(t2, t2)
        a(f'v_sqrt_f32 v{t2}, v{t2}')
        bf16r(mb, mb)
        bf16r(t2, t2)
        a(f'v_rcp_f32 v{rs}, v{t2}')

    a('s_cmp_ge_u32 s2, 256')
    a('s_cbranch_scc1 L_end')
    stamp(0)
    a('s_load_dwordx16 s[4:19], s[0:1], 0')
    a('s_load_dwordx4 s[20:23], s[0:1], 64')
    a('s_load_dwordx2 s[24:25], s[0:1], 80')
    a('v_lshrrev_b32 v1, 6, v0')
    a('v_and_b32 v0, 63, v0')
    a('v_readfirstlane_b32 s3, v1')
    a('s_and_b32 s26, s2, 31')
    a('s_lshr_b32 s27, s2, 5')
    a('s_cmp_ge_u32 s3, 4')
    a('s_cbranch_scc1 L_T')

    Q, MK, S, X, A0, A1, D, T, RING = 2, 6, 10, 18, 34, 38, 42, 46, 64
    a('v_lshlrev_b32 v1, 10, v1')
    a('v_lshl_add_u32 v1, v0, 4, v1')
    a('s_lshl_b32 s34, s26, 22')
    a('s_lshl_b32 s35, s27, 19')
    a('s_add_u32 s34, s34, s35')
    a('s_mov_b32 s30, 0x80000')
    a('s_mov_b32 s31, 0x20000')
    a('s_waitcnt lgkmcnt(0)')
    a('s_add_u32 s28, s6, s34')
    a('s_addc_u32 s29, s7, 0')
    a('s_add_u32 s32, s8, s34')
    a('s_addc_u32 s33, s9, 0')
    a('s_mov_b32 s34, 0')
    def kvload(slot):
        r = RING + 4 * slot
        a(f'buffer_load_dwordx4 v[{r}:{r+3}], v1, s[28:31], s34 offen {kvpol}')
        a('s_add_u32 s34, s34, 4096')
    for j in range(32):
        kvload(j)
    make_masks(MK, T, T + 1)
    a('s_mov_b32 s36, 0xcccccccc')
    a('s_mov_b32 s37, 0xcccccccc')
    a('s_mov_b32 s38, 0xaaaaaaaa')
    a('s_mov_b32 s39, 0xaaaaaaaa')
    a(f'v_and_b32 v{T}, 15, v0')
    a(f'v_lshlrev_b32 v{T}, 5, v{T}')
    for r in range(4):
        a(f'v_mov_b32 v{D+r}, 0')
    a('s_barrier')
    QT = 192
    for w in range(4):
        a(f'ds_read_b128 v[{QT+8*w}:{QT+8*w+3}], v{T} offset:{L_QP + 512*w}')
        a(f'ds_read_b128 v[{QT+8*w+4}:{QT+8*w+7}], v{T} offset:{L_QP + 512*w + 16}')
    a('s_waitcnt lgkmcnt(0)')
    for j in range(8):
        a(f'v_add_f32 v{QT+j}, v{QT+j}, v{QT+8+j}')
        a(f'v_add_f32 v{QT+16+j}, v{QT+16+j}, v{QT+24+j}')
    for j in range(8):
        a(f'v_add_f32 v{QT+j}, v{QT+j}, v{QT+16+j}')
    for r in range(4):
        a(f'v_cvt_pk_bf16_f32 v{Q+r}, v{QT+2*r}, v{QT+2*r+1}')
    stamp(1)
    a('s_mov_b32 s35, 0')
    a.fence()
    a.label('L_kloop')
    a('s_cmp_eq_u32 s35, 3')
    a('s_cselect_b32 s28, s32, s28')
    a('s_cselect_b32 s29, s33, s29')
    a('s_cselect_b32 s34, 0, s34')
    for b in range(2):
        for t in range(16):
            slot = 16 * b + t
            r = RING + 4 * slot
            a('s_waitcnt vmcnt(31)')
            a(f'v_dot2_f32_bf16 v{X+t}, v{r}, v{Q}, 0')
            for k in range(1, 4):
                a(f'v_dot2_f32_bf16 v{X+t}, v{r+k}, v{Q+k}, v{X+t}')
            kvload(slot)
        for k in range(8):
            a(f'v_add_f32_dpp v{X+k}, v{X+k}, v{X+k} row_mirror row_mask:0xf bank_mask:0x3')
        for k in range(8):
            a(f'v_add_f32_dpp v{X+k}, v{X+k+8}, v{X+k+8} row_mirror row_mask:0xf bank_mask:0xc')
        for k in range(4):
            a(f'v_add_f32_dpp v{X+k}, v{X+k}, v{X+k} row_half_mirror row_mask:0xf bank_mask:0x5')
        for k in range(4):
            a(f'v_add_f32_dpp v{X+k}, v{X+k+4}, v{X+k+4} row_half_mirror row_mask:0xf bank_mask:0xa')
        for k in range(4):
            a(f'v_add_f32_dpp v{X+k}, v{X+k}, v{X+k} quad_perm:[2,3,0,1] {DPPF}')
        a(f'v_cndmask_b32 v{X}, v{X}, v{X+2}, s[36:37]')
        a(f'v_cndmask_b32 v{X+1}, v{X+1}, v{X+3}, s[36:37]')
        for k in range(2):
            a(f'v_add_f32_dpp v{X+k}, v{X+k}, v{X+k} quad_perm:[1,0,3,2] {DPPF}')
        if b == 0:
            for k in range(6):
                a(f'v_mov_b32 v{S+k}, v{S+k+2}')
        a(f'v_cndmask_b32 v{S+6+b}, v{X}, v{X+1}, s[38:39]')
    a('s_add_u32 s35, s35, 1')
    a('s_cmp_lt_u32 s35, 4')
    a.fence()
    a('s_cbranch_scc1 L_kloop')
    stamp(2)
    for k in range(8):
        bf16r(S + k, S + k)
    for k in range(8):
        a(f'v_mul_f32 v{S+k}, {hex(SCALE)}, v{S+k}')
    for k in range(8):
        bf16r(S + k, S + k)
    M, L = T, T + 1
    a(f'v_max3_f32 v{M}, v{S}, v{S+1}, v{S+2}')
    a(f'v_max3_f32 v{M}, v{M}, v{S+3}, v{S+4}')
    a(f'v_max3_f32 v{M}, v{M}, v{S+5}, v{S+6}')
    a(f'v_max_f32 v{M}, v{M}, v{S+7}')
    allreduce('v_max_f32', [M], [T + 2])
    for k in range(8):
        a(f'v_sub_f32 v{S+k}, v{S+k}, v{M}')
    for k in range(8):
        a(f'v_mul_f32 v{S+k}, {hex(LOG2E)}, v{S+k}')
    for k in range(8):
        a(f'v_exp_f32 v{S+k}, v{S+k}')
    a(f'v_add_f32 v{L}, v{S}, v{S+1}')
    for k in range(2, 8):
        a(f'v_add_f32 v{L}, v{L}, v{S+k}')
    for k in range(8):
        a(f'v_cvt_pk_bf16_f32 v{S+k}, v{S+k}, v{S+k}')
    allreduce('v_add_f32', [L], [T + 2])
    a(f's_lshl_b32 s40, s3, 3')
    a(f'v_mov_b32 v{T+2}, s40')
    a('s_mov_b64 exec, 1')
    a(f'ds_write_b64 v{T+2}, v[{M}:{L}] offset:{L_ML}')
    a('s_mov_b64 exec, -1')
    a('s_mov_b32 s35, 0')
    a.fence()
    a.label('L_vloop')
    AB = [A0, A1]
    def mkA(p, t):
        for r in range(4):
            a(f'v_and_b32_dpp v{AB[t&1]+r}, v{p}, v{MK+r} row_newbcast:{t} {DPPF}')
    for b in range(2):
        mkA(S + b, 0)
        for t in range(16):
            slot = 16 * b + t
            r = RING + 4 * slot
            if t < 15: mkA(S + b, t + 1)
            a('s_waitcnt vmcnt(31)')
            A = AB[t & 1]
            a(f'v_mfma_f32_16x16x32_bf16 v[{D}:{D+3}], v[{A}:{A+3}], v[{r}:{r+3}], v[{D}:{D+3}]')
            kvload(slot)
    for k in range(6):
        a(f'v_mov_b32 v{S+k}, v{S+k+2}')
    a('s_add_u32 s35, s35, 1')
    a('s_cmp_lt_u32 s35, 4')
    a.fence(2)
    a('s_cbranch_scc1 L_vloop')
    a(f'v_and_b32 v{T}, 15, v0')
    a(f'v_lshlrev_b32 v{T}, 5, v{T}')
    a(f'v_lshrrev_b32 v{T+1}, 4, v0')
    a(f'v_lshl_add_u32 v{T}, v{T+1}, 4, v{T}')
    a(f's_lshl_b32 s40, s3, 9')
    a(f'v_add_u32 v{T}, s40, v{T}')
    a('s_mov_b32 exec_hi, 0')
    a('s_nop 3')
    a(f'ds_write_b128 v{T}, v[{D}:{D+3}] offset:{L_OP}')
    stamp(3)
    a('s_waitcnt lgkmcnt(0)')
    a('s_barrier')
    if diag:
        a('s_mov_b32 s26, 0x20000000')
        a('s_mov_b32 s27, 0x20000')
        a('s_lshl_b32 s40, s2, 8')
        a('s_lshl_b32 s41, s3, 4')
        a('s_add_u32 s40, s40, s41')
        a(f's_add_u32 s40, s40, {WS_DIAG + 64}')
        for i in range(4):
            a(f'v_mov_b32 v{T+i}, s{60+2*i}')
        a('s_mov_b64 exec, 1')
        a(f'buffer_store_dwordx4 v[{T}:{T+3}], off, s[24:27], s40')
    a('s_endpgm')

    a.fence(0)
    a.label('L_T')
    XR, XS, XF, TT, MK, XA, A0, A1, D, WQ = 2, 6, 8, 16, 32, 36, 38, 42, 46, 64
    a('s_sub_u32 s3, s3, 4')
    a('s_mov_b32 s30, 1024')
    a('s_mov_b32 s31, 0x20000')
    a('s_lshl_b32 s40, s26, 8')
    a('s_lshl_b32 s41, s3, 20')
    a('s_add_u32 s40, s40, s41')
    a('s_sub_u32 s34, 0x400000, s40')
    a('s_mov_b32 s35, 0x20000')
    a(f'v_lshlrev_b32 v{TT}, 4, v0')
    a(f'v_and_b32 v{TT+1}, 15, v0')
    a(f'v_lshrrev_b32 v{TT+2}, 4, v0')
    a(f'v_lshlrev_b32 v1, 13, v{TT+2}')
    a(f'v_lshl_add_u32 v1, v{TT+1}, 4, v1')
    a(f'v_lshl_add_u32 v{TT+3}, v{TT+1}, 2, v{TT+2}')
    a(f'v_lshlrev_b32 v{TT+3}, 1, v{TT+3}')
    a('s_lshl_b32 s41, s3, 8')
    a('s_waitcnt lgkmcnt(0)')
    a('s_mov_b32 s28, s4')
    a('s_mov_b32 s29, s5')
    a('s_add_u32 s32, s10, s40')
    a('s_addc_u32 s33, s11, 0')
    a(f'buffer_load_dwordx4 v[{XR}:{XR+3}], v{TT}, s[28:31], 0 offen')
    a(f'buffer_load_ushort v{XS}, v{TT+3}, s[28:31], s41 offen')
    a(f'buffer_load_ushort v{XS+1}, v{TT+3}, s[28:31], s41 offen offset:128')
    a('s_mov_b32 s42, 0')
    for t in range(32):
        r = WQ + 4 * t
        a(f'buffer_load_dwordx4 v[{r}:{r+3}], v1, s[32:35], s42 offen {wqpol}')
        if t < 31: a('s_add_u32 s42, s42, 0x8000')
    make_masks(MK, TT + 4, TT + 5)
    a(f'v_mov_b32 v{TT+4}, -1')
    a(f'v_lshlrev_b32 v{TT+5}, 2, v{TT+1}')
    a(f'ds_write_b32 v{TT+5}, v{TT+4} offset:{L_ML}')
    a('s_waitcnt vmcnt(32)')
    for r in range(4):
        a(f'v_lshlrev_b32 v{XF+2*r}, 16, v{XR+r}')
        a(f'v_and_b32 v{XF+2*r+1}, 0xffff0000, v{XR+r}')
    MB, RS = 50, 51
    ln_stats(XF, TT + 4, TT + 12, TT + 13, TT + 14, TT + 15, MB, RS, 43)
    for b in range(2):
        a(f'v_lshlrev_b32 v{XS+b}, 16, v{XS+b}')
        a(f'v_sub_f32 v{XS+b}, v{XS+b}, v{MB}')
        bf16r(XS + b, XS + b)
        a(f'v_mul_f32 v{XS+b}, v{XS+b}, v{RS}')
        a(f'v_cvt_pk_bf16_f32 v{XA+b}, v{XS+b}, v{XS+b}')
    AB = [A0, A1]
    def mkA2(p, t):
        for r in range(4):
            a(f'v_and_b32_dpp v{AB[t&1]+r}, v{p}, v{MK+r} row_newbcast:{t&15} {DPPF}')
    mkA2(XA, 0)
    for t in range(32):
        if t < 31: mkA2(XA + ((t + 1) >> 4), t + 1)
        a(f's_waitcnt vmcnt({31-t})')
        A = AB[t & 1]; r = WQ + 4 * t
        c = '0' if t == 0 else f'v[{D}:{D+3}]'
        a(f'v_mfma_f32_16x16x32_bf16 v[{D}:{D+3}], v[{A}:{A+3}], v[{r}:{r+3}], {c}')
    a(f'v_lshlrev_b32 v{TT+4}, 5, v{TT+1}')
    a(f'v_lshl_add_u32 v{TT+4}, v{TT+2}, 4, v{TT+4}')
    a('s_lshl_b32 s40, s3, 9')
    a(f'v_add_u32 v{TT+4}, s40, v{TT+4}')
    a('s_mov_b32 exec_hi, 0')
    a(f'ds_write_b128 v{TT+4}, v[{D}:{D+3}] offset:{L_QP}')
    a('s_mov_b32 exec_hi, -1')
    a('s_waitcnt lgkmcnt(0)')
    a('s_barrier')
    a('s_cmp_lg_u32 s3, 0')
    a('s_cbranch_scc1 L_end')
    stamp(1)

    a('s_mov_b32 s28, s24')
    a('s_mov_b32 s29, s25')
    a(f's_mov_b32 s30, {WS_SZ}')
    a(f's_add_u32 s36, s24, {WS_F}')
    a('s_addc_u32 s37, s25, 0')
    a('s_mov_b32 s38, 3584')
    a('s_mov_b32 s39, 0x20000')
    a('s_mov_b32 s44, s22')
    a('s_mov_b32 s45, s23')
    a('s_mov_b32 s46, 256')
    a('s_mov_b32 s47, 0x20000')
    a('s_mov_b32 s48, s20')
    a('s_mov_b32 s49, s21')
    a('s_mov_b32 s50, 1024')
    a('s_mov_b32 s51, 0x20000')
    a('s_lshl_b32 s52, s26, 3')
    a('s_add_u32 s52, s52, s27')
    a('s_lshl_b32 s53, s52, 3')
    a('s_lshl_b32 s54, s52, 8')
    a(f's_add_u32 s54, s54, {WS_OP}')
    a('s_and_b32 s55, s26, 3')
    a('s_lshr_b32 s56, s26, 2')
    a('s_lshl_b32 s56, s56, 3')
    a('s_add_u32 s56, s56, s27')
    a('s_lshl_b32 s57, s55, 11')
    a('s_lshl_b32 s40, s56, 5')
    a('s_add_u32 s57, s57, s40')
    a(f's_add_u32 s57, s57, {WS_Y}')
    a('s_lshl_b32 s58, s52, 4')
    a('s_and_b32 s59, s2, 7')
    a('s_lshl_b32 s59, s59, 5')
    a('s_lshr_b32 s40, s2, 3')
    a('s_add_u32 s59, s59, s40')
    G = 192
    for r in range(4):
        a(f'v_mov_b32 v{G+r}, -1')
    VQ = 52
    a(f'v_lshrrev_b32 v{VQ}, 2, v0')
    a(f'v_lshlrev_b32 v{VQ}, 4, v{VQ}')
    a('s_mov_b32 exec_lo, 0x11111111')
    a('s_mov_b32 exec_hi, 0x11111111')
    a(f'buffer_store_dwordx4 v[{G}:{G+3}], v{VQ}, s[28:31], s54 offen sc1')
    a('s_mov_b64 exec, 0x11')
    a(f'buffer_store_dwordx4 v[{G}:{G+3}], v{VQ}, s[28:31], s57 offen sc1')
    a('s_mov_b64 exec, 1')
    a(f'buffer_store_dwordx4 v[{G}:{G+3}], off, s[36:39], s58 sc1')
    a(f'buffer_store_dwordx2 v[{G}:{G+1}], off, s[28:31], s53 sc1')
    a('s_waitcnt vmcnt(0)')
    a(f'v_mov_b32 v{G}, 1')
    a(f'buffer_atomic_add v{G}, off, s[44:47], 0 sc1')
    a('s_mov_b64 exec, -1')
    WO, W1, W2 = 64, 128, 160
    a('s_lshl_b32 s40, s55, 20')
    a('s_lshl_b32 s41, s56, 4')
    a('s_add_u32 s40, s40, s41')
    a('s_add_u32 s32, s12, s40')
    a('s_addc_u32 s33, s13, 0')
    a('s_sub_u32 s34, 0x400000, s40')
    a(f'v_bfe_u32 v{TT+4}, v0, 3, 1')
    a(f'v_lshlrev_b32 v{TT+4}, 15, v{TT+4}')
    a(f'v_lshl_add_u32 v{TT+4}, v{TT+2}, 13, v{TT+4}')
    a(f'v_and_b32 v{TT+5}, 7, v0')
    a(f'v_lshl_add_u32 v{TT+4}, v{TT+5}, 1, v{TT+4}')
    for half in range(2):
        for sidx in range(8):
            step = half * 8 + sidx
            for jh in range(2):
                a(f's_mov_b32 s42, {step * 65536 + jh * 4096}')
                for jl in range(4):
                    a(f'buffer_load_ushort v{G + sidx*8 + jh*4 + jl}, v{TT+4}, s[32:35], s42 offen offset:{jl*1024} {wpol}')
        a('s_waitcnt vmcnt(0)')
        for sidx in range(8):
            step = half * 8 + sidx
            for r in range(4):
                a(f'v_lshl_or_b32 v{WO + step*4 + r}, v{G + sidx*8 + 2*r + 1}, 16, v{G + sidx*8 + 2*r}')
    a('s_lshl_b32 s40, s52, 4')
    a('s_add_u32 s32, s16, s40')
    a('s_addc_u32 s33, s17, 0')
    a(f's_sub_u32 s34, {512*3584}, s40')
    a('s_cmp_lt_u32 s52, 224')
    a('s_cselect_b32 s34, s34, 0')
    a(f's_mov_b32 s40, {8*3584}')
    a(f'v_mul_lo_u32 v{TT+4}, v0, s40')
    for j in range(8):
        a(f's_mov_b32 s42, {j*3584}')
        a(f'buffer_load_dwordx4 v[{G+4*j}:{G+4*j+3}], v{TT+4}, s[32:35], s42 offen {wpol}')
    a('s_lshl_b32 s40, s59, 2')
    a('s_add_u32 s4, s18, s40')
    a('s_addc_u32 s5, s19, 0')
    a(f's_sub_u32 s6, {1792*1024}, s40')
    a('s_mov_b32 s7, 0x20000')
    a(f'v_lshlrev_b32 v{TT+5}, 13, v0')
    for st in range(4):
        for jh in range(2):
            a(f's_mov_b32 s42, {st*512*1024 + jh*4096}')
            for jl in range(4):
                a(f'buffer_load_dword v{G+32+st*8+jh*4+jl}, v{TT+5}, s[4:7], s42 offen offset:{jl*1024} {wpol}')
    a('s_mov_b32 s40, 0x05040100')
    a('s_mov_b32 s41, 0x07060302')
    a('s_waitcnt vmcnt(32)')
    for r in range(4):
        for q in range(4):
            a(f'v_perm_b32 v{W1 + (2*q)*4 + r}, v{G + 4*(2*r+1) + q}, v{G + 4*(2*r) + q}, s40')
            a(f'v_perm_b32 v{W1 + (2*q+1)*4 + r}, v{G + 4*(2*r+1) + q}, v{G + 4*(2*r) + q}, s41')
    a('s_waitcnt vmcnt(0)')
    for st in range(4):
        for r in range(4):
            lo = G + 32 + st*8 + 2*r
            a(f'v_perm_b32 v{W2 + st*4 + r}, v{lo+1}, v{lo}, s40')
            a(f'v_perm_b32 v{W2 + 16 + st*4 + r}, v{lo+1}, v{lo}, s41')
    VA2, VA3, VA4, VL8, VML = 53, 54, 55, 56, 57
    a(f'v_and_b32 v{VA2}, 7, v0')
    a(f'v_lshlrev_b32 v{VA2}, 8, v{VA2}')
    a(f'v_bfe_u32 v{TT+4}, v0, 3, 1')
    a(f'v_lshl_add_u32 v{VA2}, v{TT+4}, 6, v{VA2}')
    a(f'v_lshl_add_u32 v{VA2}, v{TT+2}, 4, v{VA2}')
    a(f'v_lshlrev_b32 v{VA3}, 5, v0')
    a(f'v_lshlrev_b32 v{VA4}, 4, v0')
    a(f'v_lshlrev_b32 v{VL8}, 3, v0')
    a(f'v_and_b32 v{VML}, 7, v0')
    a(f'v_lshlrev_b32 v{VML}, 3, v{VML}')
    a('s_lshl_b32 s8, s55, 14')
    a(f's_add_u32 s8, s8, {WS_OP}')
    a('s_add_u32 s9, s8, 4096')
    a('s_add_u32 s10, s8, 8192')
    a('s_add_u32 s11, s8, 12288')
    a(f's_mov_b32 s12, {WS_Y}')
    a(f's_mov_b32 s13, {WS_Y + 4096}')
    a('s_lshl_b32 s14, s26, 6')
    a('s_mov_b32 s84, 0xcccccccc')
    a('s_mov_b32 s85, 0xcccccccc')
    a('s_mov_b32 s86, 0xff00ff00')
    a('s_mov_b32 s87, 0xff00ff00')
    stamp(2)
    MW, LW, E, MM, LL, T1 = 16 + 4, 16 + 5, 16 + 6, 16 + 8, 16 + 9, 16 + 10
    a(f'v_and_b32 v{T1}, 3, v0')
    a(f'v_lshlrev_b32 v{T1}, 3, v{T1}')
    a(f's_mov_b32 s43, {timeout}')
    a.fence()
    a.label('L_pollml')
    a('s_sleep 8')
    a(f'ds_read_b64 v[{MW}:{LW}], v{T1} offset:{L_ML}')
    a('s_sub_u32 s43, s43, 1')
    a('s_cbranch_scc1 L_pollml_done')
    a('s_waitcnt lgkmcnt(0)')
    a(f'v_cmp_u_f32 vcc, v{MW}, v{LW}')
    a('s_cbranch_vccnz L_pollml')
    a.label('L_pollml_done')
    a('s_waitcnt lgkmcnt(0)')
    a.fence()
    a(f'v_max_f32_dpp v{MM}, v{MW}, v{MW} quad_perm:[1,0,3,2] {DPPF}')
    a(f'v_max_f32_dpp v{MM}, v{MM}, v{MM} quad_perm:[2,3,0,1] {DPPF}')
    a(f'v_sub_f32 v{E}, v{MW}, v{MM}')
    a(f'v_mul_f32 v{E}, {hex(LOG2E)}, v{E}')
    a(f'v_exp_f32 v{E}, v{E}')
    a(f'v_mul_f32 v{LL}, v{E}, v{LW}')
    a(f'v_add_f32_dpp v{LL}, v{LL}, v{LL} quad_perm:[1,0,3,2] {DPPF}')
    a(f'v_add_f32_dpp v{LL}, v{LL}, v{LL} quad_perm:[2,3,0,1] {DPPF}')
    a('s_mov_b64 exec, 1')
    a(f'buffer_store_dwordx2 v[{MM}:{LL}], off, s[28:31], s53 sc1')
    a('s_mov_b64 exec, -1')
    stamp(3)
    a(f's_mov_b32 s43, {timeout}')
    a.fence()
    a.label('L_pollcnt')
    a(f'buffer_load_dword v{E}, off, s[44:47], 0 sc1')
    a('s_sub_u32 s43, s43, 1')
    a('s_cbranch_scc1 L_pollcnt_done')
    a('s_waitcnt vmcnt(0)')
    a(f'v_cmp_ne_u32 vcc, 0x100, v{E}')
    a('s_cbranch_vccz L_pollcnt_done')
    a('s_sleep 8')
    a('s_branch L_pollcnt')
    a.label('L_pollcnt_done')
    a(f's_mov_b32 s43, {timeout}')
    MS, LS, MH, LH = 26, 27, 28, 29
    a.fence()
    a.label('L_pollhead')
    a(f'buffer_load_dwordx2 v[{MS}:{LS}], v{VML}, s[28:31], s14 offen sc1')
    a('s_waitcnt vmcnt(0)')
    a(f'v_max_f32_dpp v{MH}, v{MS}, v{MS} quad_perm:[1,0,3,2] {DPPF}')
    a(f'v_max_f32_dpp v{MH}, v{MH}, v{MH} quad_perm:[2,3,0,1] {DPPF}')
    a(f'v_max_f32_dpp v{MH}, v{MH}, v{MH} row_half_mirror {DPPF}')
    a(f'v_sub_f32 v{E}, v{MS}, v{MH}')
    a(f'v_mul_f32 v{E}, {hex(LOG2E)}, v{E}')
    a(f'v_exp_f32 v{E}, v{E}')
    a(f'v_mul_f32 v{LH}, v{E}, v{LS}')
    a(f'v_add_f32_dpp v{LH}, v{LH}, v{LH} quad_perm:[1,0,3,2] {DPPF}')
    a(f'v_add_f32_dpp v{LH}, v{LH}, v{LH} quad_perm:[2,3,0,1] {DPPF}')
    a(f'v_add_f32_dpp v{LH}, v{LH}, v{LH} row_half_mirror {DPPF}')
    a('s_sub_u32 s43, s43, 1')
    a('s_cbranch_scc1 L_pollhead_done')
    a(f'v_cmp_u_f32 vcc, v{LH}, v{LH}')
    a('s_cbranch_vccz L_pollhead_done')
    a('s_sleep 8')
    a('s_branch L_pollhead')
    a.label('L_pollhead_done')
    a.fence()
    a(f'v_sub_f32 v{E}, v{MW}, v{MH}')
    a(f'v_mul_f32 v{E}, {hex(LOG2E)}, v{E}')
    a(f'v_exp_f32 v{E}, v{E}')
    a(f'v_rcp_f32 v{LH}, v{LH}')
    a(f'v_mul_f32 v{E}, v{E}, v{LH}')
    for w in range(4):
        a(f'v_readlane_b32 s{88+w}, v{E}, {w}')
    stamp(4)
    a('s_barrier')
    for w in range(4):
        a(f'ds_read_b64 v[{G+2*w}:{G+2*w+1}], v{VL8} offset:{L_OP + 512*w}')
    stamp(5)
    a('s_waitcnt lgkmcnt(0)')
    O0, O1, U = 20, 21, 24
    a(f'v_mul_f32 v{O0}, s88, v{G}')
    a(f'v_mul_f32 v{O1}, s88, v{G+1}')
    for w in range(1, 4):
        a(f'v_fmac_f32 v{O0}, s{88+w}, v{G+2*w}')
        a(f'v_fmac_f32 v{O1}, s{88+w}, v{G+2*w+1}')
    a(f'v_cvt_pk_bf16_f32 v{U}, v{O0}, v{O1}')
    for k in range(1, 4):
        a(f'v_mov_b32_dpp v{U+k}, v{U} quad_perm:[{k},{k},{k},{k}] {DPPF}')
    a('s_mov_b32 exec_lo, 0x11111111')
    a('s_mov_b32 exec_hi, 0x11111111')
    a(f'buffer_store_dwordx4 v[{U}:{U+3}], v{VQ}, s[28:31], s54 offen sc1')
    a('s_mov_b64 exec, -1')
    a(f's_mov_b32 s43, {timeout}')
    D2, TA, TB = 28, 20, 21
    a.fence()
    a.label('L_s2')
    for step in range(16):
        hh, st = step >> 1, step & 1
        a(f'buffer_load_dwordx4 v[{G+4*step}:{G+4*step+3}], v{VA2}, s[28:31], s{8 + (hh>>1)} offen offset:{(hh&1)*2048 + st*128} sc1')
    for step in range(16):
        a(f's_waitcnt vmcnt({15-step})')
        c = '0' if step == 0 else f'v[{D2}:{D2+3}]'
        a(f'v_mfma_f32_16x16x32_bf16 v[{D2}:{D2+3}], v[{G+4*step}:{G+4*step+3}], v[{WO+4*step}:{WO+4*step+3}], {c}')
    a(f'v_add_f32 v{TA}, v{D2}, v{D2+1}')
    a(f'v_add_f32 v{TB}, v{D2+2}, v{D2+3}')
    a(f'v_add_f32 v{TA}, v{TA}, v{TB}')
    a(f'v_mov_b32 v{TB}, v{TA}')
    a(f'v_permlane16_swap_b32 v{TA}, v{TB}')
    a(f'v_add_f32 v{TA}, v{TA}, v{TB}')
    a(f'v_mov_b32 v{TB}, v{TA}')
    a(f'v_permlane32_swap_b32 v{TA}, v{TB}')
    a(f'v_add_f32_dpp v{U}, v{TB}, v{TA} row_ror:8 {DPPF}')
    a('s_sub_u32 s43, s43, 1')
    a('s_cbranch_scc1 L_s2_done')
    a(f'v_cmp_u_f32 vcc, v{U}, v{U}')
    a('s_cbranch_vccnz L_s2')
    a.label('L_s2_done')
    for k in range(1, 4):
        a(f'v_mov_b32_dpp v{U+k}, v{U} quad_perm:[{k},{k},{k},{k}] {DPPF}')
    a('s_mov_b64 exec, 0x11')
    a(f'buffer_store_dwordx4 v[{U}:{U+3}], v{VQ}, s[28:31], s57 offen sc1')
    a('s_mov_b64 exec, -1')
    stamp(6)
    if diag: a('s_mov_b32 s92, s43')
    a(f's_mov_b32 s43, {timeout}')
    HF, HP, DD, S1r, S2r, T1r, T2r, HN = 20, 28, 32, 40, 41, 42, 43, 44
    a.fence()
    a.label('L_s3')
    for gq in range(4):
        for hf in range(2):
            r = G + 8 * gq + 4 * hf
            a(f'buffer_load_dwordx4 v[{r}:{r+3}], v{VA3}, s[28:31], s{12 + (gq>>1)} offen offset:{(gq&1)*2048 + hf*16} sc1')
    a('s_waitcnt vmcnt(4)')
    for j in range(8):
        a(f'v_add_f32 v{G+j}, v{G+j}, v{G+8+j}')
    a('s_waitcnt vmcnt(0)')
    for j in range(8):
        a(f'v_add_f32 v{G+16+j}, v{G+16+j}, v{G+24+j}')
    for j in range(8):
        a(f'v_add_f32 v{G+j}, v{G+j}, v{G+16+j}')
    for r in range(4):
        a(f'v_cvt_pk_bf16_f32 v{HP+r}, v{G+2*r}, v{G+2*r+1}')
    for r in range(4):
        a(f'v_lshlrev_b32 v{HF+2*r}, 16, v{HP+r}')
        a(f'v_and_b32 v{HF+2*r+1}, 0xffff0000, v{HP+r}')
    for j in range(8):
        a(f'v_add_f32 v{HF+j}, v{HF+j}, v{XF+j}')
    for r in range(4):
        a(f'v_cvt_pk_bf16_f32 v{HP+r}, v{HF+2*r}, v{HF+2*r+1}')
    for r in range(4):
        a(f'v_lshlrev_b32 v{HF+2*r}, 16, v{HP+r}')
        a(f'v_and_b32 v{HF+2*r+1}, 0xffff0000, v{HP+r}')
    ln_stats(HF, DD, S1r, S2r, T1r, T2r, MB, RS, 40)
    a('s_sub_u32 s43, s43, 1')
    a('s_cbranch_scc1 L_s3_done')
    a(f'v_cmp_u_f32 vcc, v{S1r}, v{S1r}')
    a('s_cbranch_vccnz L_s3')
    a.label('L_s3_done')
    stamp(7)
    if diag: a('s_mov_b32 s93, s43')
    for j in range(8):
        a(f'v_sub_f32 v{DD+j}, v{HF+j}, v{MB}')
    for r in range(4):
        a(f'v_cvt_pk_bf16_f32 v{HN+r}, v{DD+2*r}, v{DD+2*r+1}')
    for r in range(4):
        a(f'v_lshlrev_b32 v{DD+2*r}, 16, v{HN+r}')
        a(f'v_and_b32 v{DD+2*r+1}, 0xffff0000, v{HN+r}')
    for j in range(8):
        a(f'v_mul_f32 v{DD+j}, v{DD+j}, v{RS}')
    for r in range(4):
        a(f'v_cvt_pk_bf16_f32 v{HN+r}, v{DD+2*r}, v{DD+2*r+1}')
    UU = 32
    for r in range(4):
        for cc in range(8):
            c = '0' if r == 0 else f'v{UU+cc}'
            a(f'v_dot2_f32_bf16 v{UU+cc}, v{HN+r}, v{W1+cc*4+r}, {c}')
    for k in range(4):
        a(f'v_add_f32_dpp v{UU+k}, v{UU+k}, v{UU+k} row_mirror row_mask:0xf bank_mask:0x3')
    for k in range(4):
        a(f'v_add_f32_dpp v{UU+k}, v{UU+k+4}, v{UU+k+4} row_mirror row_mask:0xf bank_mask:0xc')
    for k in range(2):
        a(f'v_add_f32_dpp v{UU+k}, v{UU+k}, v{UU+k} row_half_mirror row_mask:0xf bank_mask:0x5')
    for k in range(2):
        a(f'v_add_f32_dpp v{UU+k}, v{UU+k+2}, v{UU+k+2} row_half_mirror row_mask:0xf bank_mask:0xa')
    for k in range(2):
        a(f'v_add_f32_dpp v{UU+k}, v{UU+k}, v{UU+k} quad_perm:[2,3,0,1] {DPPF}')
    a(f'v_cndmask_b32 v{UU}, v{UU}, v{UU+1}, s[84:85]')
    a(f'v_add_f32_dpp v{UU}, v{UU}, v{UU} quad_perm:[1,0,3,2] {DPPF}')
    for sw in ('v_permlane16_swap_b32', 'v_permlane32_swap_b32'):
        a(f'v_mov_b32 v{UU+1}, v{UU}')
        a(f'{sw} v{UU}, v{UU+1}')
        a(f'v_add_f32 v{UU}, v{UU}, v{UU+1}')
    bf16r(UU, UU)
    a(f'v_mul_f32 v{UU+1}, {hex(LOG2E ^ 0x80000000)}, v{UU}')
    a(f'v_exp_f32 v{UU+1}, v{UU+1}')
    a(f'v_add_f32 v{UU+1}, 1.0, v{UU+1}')
    a(f'v_rcp_f32 v{UU+1}, v{UU+1}')
    a(f'v_mul_f32 v{UU}, v{UU}, v{UU+1}')
    a(f'v_mov_b32_dpp v{UU+1}, v{UU} quad_perm:[2,3,2,3] {DPPF}')
    FP = 36
    a(f'v_cvt_pk_bf16_f32 v{FP}, v{UU}, v{UU+1}')
    for k in range(1, 4):
        a(f'v_mov_b32_dpp v{FP+k}, v{FP} row_shl:{4*k} {DPPF}')
    a('s_mov_b64 exec, 1')
    a(f'buffer_store_dwordx4 v[{FP}:{FP+3}], off, s[36:39], s58 sc1')
    a('s_mov_b64 exec, -1')
    a('s_lshr_b32 s40, s59, 2')
    a('s_and_b32 s41, s59, 3')
    for r in range(4):
        a(f'v_readlane_b32 s{88+r}, v{HP+r}, s40')
    a('s_cmp_eq_u32 s41, 1')
    a('s_cselect_b32 s88, s89, s88')
    a('s_cmp_eq_u32 s41, 2')
    a('s_cselect_b32 s88, s90, s88')
    a('s_cmp_eq_u32 s41, 3')
    a('s_cselect_b32 s88, s91, s88')
    a('s_lshl_b32 s89, s88, 16')
    a('s_and_b32 s90, s88, 0xffff0000')
    HR = 40
    a(f'v_mov_b32 v{HR}, s89')
    a(f'v_mov_b32 v{HR+1}, s90')
    a(f'v_cndmask_b32 v{HR}, v{HR}, v{HR+1}, s[86:87]')
    a('s_lshl_b32 s41, s59, 2')
    a(f's_mov_b32 s43, {timeout}')
    C0 = 32
    a.fence()
    a.label('L_s4')
    for st in range(4):
        a(f'buffer_load_dwordx4 v[{G+4*st}:{G+4*st+3}], v{VA4}, s[36:39], 0 offen offset:{st*1024} sc1')
    for st in range(4):
        a(f's_waitcnt vmcnt({3-st})')
        for r in range(4):
            for col in range(2):
                acc = C0 + col + 2 * (r & 1)
                c = '0' if (st == 0 and r < 2) else f'v{acc}'
                a(f'v_dot2_f32_bf16 v{acc}, v{G+4*st+r}, v{W2+16*col+4*st+r}, {c}')
    a(f'v_add_f32 v{C0}, v{C0}, v{C0+2}')
    a(f'v_add_f32 v{C0+1}, v{C0+1}, v{C0+3}')
    a(f'v_add_f32_dpp v{C0}, v{C0}, v{C0} row_mirror row_mask:0xf bank_mask:0x3')
    a(f'v_add_f32_dpp v{C0}, v{C0+1}, v{C0+1} row_mirror row_mask:0xf bank_mask:0xc')
    a(f'v_add_f32_dpp v{C0}, v{C0}, v{C0} row_half_mirror {DPPF}')
    a(f'v_add_f32_dpp v{C0}, v{C0}, v{C0} quad_perm:[2,3,0,1] {DPPF}')
    a(f'v_add_f32_dpp v{C0}, v{C0}, v{C0} quad_perm:[1,0,3,2] {DPPF}')
    for sw in ('v_permlane16_swap_b32', 'v_permlane32_swap_b32'):
        a(f'v_mov_b32 v{C0+1}, v{C0}')
        a(f'{sw} v{C0}, v{C0+1}')
        a(f'v_add_f32 v{C0}, v{C0}, v{C0+1}')
    a('s_sub_u32 s43, s43, 1')
    a('s_cbranch_scc1 L_s4_done')
    a(f'v_cmp_u_f32 vcc, v{C0}, v{C0}')
    a('s_cbranch_vccnz L_s4')
    a.label('L_s4_done')
    stamp(8)
    if diag: a('s_mov_b32 s94, s43')
    bf16r(C0, C0)
    a(f'v_add_f32 v{C0}, v{C0}, v{HR}')
    a(f'v_mov_b32_dpp v{C0+1}, v{C0} row_shl:8 {DPPF}')
    a(f'v_cvt_pk_bf16_f32 v{C0}, v{C0}, v{C0+1}')
    a('s_mov_b64 exec, 1')
    a(f'buffer_store_dword v{C0}, off, s[48:51], s41')
    if diag:
        stamp(9)
        a('s_waitcnt lgkmcnt(0)')
        a('s_mov_b32 s26, 0x20000000')
        a('s_mov_b32 s27, 0x20000')
        a('s_lshl_b32 s40, s2, 8')
        a(f's_add_u32 s40, s40, {WS_DIAG}')
        for i in range(10):
            a(f'v_mov_b32 v{G+i}, s{60+2*i}')
        for i in range(3):
            a(f'v_mov_b32 v{G+10+i}, s{92+i}')
        a('s_getreg_b32 s41, hwreg(HW_REG_XCC_ID)')
        a(f'v_mov_b32 v{G+13}, s41')
        for i in range(4):
            a(f'buffer_store_dwordx4 v[{G+4*i}:{G+4*i+3}], off, s[24:27], s40 offset:{16*i}')
    a.label('L_end')
    a('s_endpgm')
    a.raw('.section .rodata,"a"')
    a.raw('.p2align 6')
    a.raw(f'.amdhsa_kernel {KN}')
    a.raw('  .amdhsa_next_free_vgpr 256')
    a.raw('  .amdhsa_next_free_sgpr 96')
    a.raw('  .amdhsa_accum_offset 256')
    a.raw('  .amdhsa_group_segment_fixed_size 0')
    a.raw('  .amdhsa_kernarg_size 88')
    a.raw('  .amdhsa_user_sgpr_count 2')
    a.raw('  .amdhsa_user_sgpr_kernarg_segment_ptr 1')
    a.raw('  .amdhsa_system_sgpr_workgroup_id_x 1')
    a.raw('.end_amdhsa_kernel')
    return a.text()

if __name__ == '__main__':
    import argparse
    ap = argparse.ArgumentParser()
    ap.add_argument('out')
    ap.add_argument('--diag', action='store_true')
    ap.add_argument('--opts', default='{}')
    args = ap.parse_args()
    open(args.out, 'w').write(gen(diag=args.diag, **eval(args.opts)))
```
